```python
import torch

def _softmax(x, axis=-1):
    return torch.softmax(x, dim=axis)
def _gelu(x):
    return torch.nn.functional.gelu(x, approximate="tanh")
def _silu(x):
    return torch.nn.functional.silu(x)
def _sigmoid(x):
    return torch.sigmoid(x)
def _layernorm(x, axis=-1, eps=1e-5):
    m = x.mean(dim=axis, keepdim=True)
    v = x.var(dim=axis, keepdim=True, unbiased=False)
    return (x - m) / torch.sqrt(v + eps)
def _scatter_add(tgt, idx, src, axis=0):
    return tgt.clone().index_add_(axis, idx, src)
def _segment_sum(src, seg, n):
    out = torch.zeros((n,) + src.shape[1:], dtype=src.dtype)
    return out.index_add_(0, seg, src)
def _pad(x, pw):
    flat = tuple(v for pair in reversed(pw) for v in pair)
    return torch.nn.functional.pad(x, flat)

kernel_name = 'concat_heads__grouped_kv_mqa__linear_attn_block__prompt'

def setup_inputs():

    _w = (lambda a: (lambda t: t.to(torch.bfloat16) if t.is_floating_point() else t)(torch.as_tensor(a)))
    def _A_setup():
        B, S, D, H = 1, 2048, 512, 32
        Dh = D // H
        return {
            "x": _w((lambda *s: torch.randn(*s, dtype=torch.bfloat16) * 0.05)(B, S, D)),
            "wq": _w((lambda *s: torch.randn(*s, dtype=torch.bfloat16) * 1.6)(D, H * Dh)),
            "wk": _w((lambda *s: torch.randn(*s, dtype=torch.bfloat16) * 1.6)(D, Dh)),
            "wv": _w((lambda *s: torch.randn(*s, dtype=torch.bfloat16) * 0.05)(D, Dh)),
            "wo": _w((lambda *s: torch.randn(*s, dtype=torch.bfloat16) * 0.05)(H * Dh, D)),
        }
    _A_in = _A_setup()

    def _B_setup():
        B, S, D = 1, 2048, 512
        return {
            "x": _w((lambda *s: torch.randn(*s, dtype=torch.bfloat16) * 0.05)(B, S, D)),
            "wqkv": _w((lambda *s: torch.randn(*s, dtype=torch.bfloat16) * 0.8)(D, 3 * D)),
            "wo": _w((lambda *s: torch.randn(*s, dtype=torch.bfloat16) * 0.05)(D, D)),
        }
    _B_in = _B_setup()

    return {
        "A_x": _A_in["x"],
        "A_wq": _A_in["wq"],
        "A_wk": _A_in["wk"],
        "A_wv": _A_in["wv"],
        "A_wo": _A_in["wo"],
        "B_x": _B_in["x"],
        "B_wqkv": _B_in["wqkv"],
        "B_wo": _B_in["wo"],
    }

def reference(A_x, A_wq, A_wk, A_wv, A_wo, B_x, B_wqkv, B_wo):
    def _A_ref(x, wq, wk, wv, wo):
        B, S, D = x.shape
        H = 32
        Dh = D // H
        q = (lambda x, *d: x.permute(*d))((x @ wq).reshape(B, S, H, Dh), 0, 2, 1, 3)
        k = x @ wk
        v = x @ wv
        scores = torch.einsum("bhqd,bkd->bhqk", q, k) * (Dh ** -0.5)
        p = _softmax(scores, axis=-1)
        o = torch.einsum("bhqk,bkd->bhqd", p, v)
        return (lambda x, *d: x.permute(*d))(o, 0, 2, 1, 3).reshape(B, S, H * Dh) @ wo

    def _B_ref(x, wqkv, wo):
        B, S, D = x.shape
        H = 32; Dh = D // H
        qkv = (lambda x, *d: x.permute(*d))((x @ wqkv).reshape(B, S, 3, H, Dh), 2, 0, 3, 1, 4)
        q, k, v = qkv[0], qkv[1], qkv[2]
        phi = lambda t: torch.where(t > 0, t + 1, torch.exp(t)) + 1e-6
        pq, pk = phi(q), phi(k)
        kv = torch.einsum("bhsd,bhse->bhde", pk, v)
        z = torch.einsum("bhsd->bhd", pk)
        num = torch.einsum("bhqd,bhde->bhqe", pq, kv)
        den = torch.einsum("bhqd,bhd->bhq", pq, z)[..., None] + 1e-6
        o = num / den
        return (lambda x, *d: x.permute(*d))(o, 0, 2, 1, 3).reshape(B, S, D) @ wo

    a = _A_ref(A_x, A_wq, A_wk, A_wv, A_wo)
    b = _B_ref(B_x, B_wqkv, B_wo)
    return torch.concatenate([a, b], axis=-1)
```

```python
import re

TRANS = ('v_exp_', 'v_log_', 'v_rcp_', 'v_rsq_', 'v_sqrt_', 'v_sin_', 'v_cos_')


def regs_of(tok):
    tok = tok.strip()
    tok = tok.lstrip('-')
    if tok.startswith('abs(') and tok.endswith(')'):
        tok = tok[4:-1]
    if tok.startswith('|') and tok.endswith('|'):
        tok = tok[1:-1]
    m = re.fullmatch(r'([vsa])(\d+)', tok)
    if m:
        return [(m.group(1), int(m.group(2)))]
    m = re.fullmatch(r'([vsa])\[(\d+):(\d+)\]', tok)
    if m:
        return [(m.group(1), i) for i in range(int(m.group(2)), int(m.group(3)) + 1)]
    if tok in ('vcc', 'vcc_lo', 'vcc_hi'):
        return [('x', 'vcc')]
    if tok in ('exec', 'exec_lo', 'exec_hi'):
        return [('x', 'exec')]
    if tok == 'm0':
        return [('x', 'm0')]
    return []


class I:
    __slots__ = ('text', 'mn', 'rd', 'wr', 'kind', 'A', 'B', 'C', 'passes', 'states', 'lds', 'stdata')

    def __init__(self, text):
        self.text = text
        t = text.split(';')[0].strip()
        parts = t.split(None, 1)
        self.mn = mn = parts[0]
        rest = parts[1] if len(parts) > 1 else ''
        ops = [o.strip() for o in rest.split(',')] if rest else []
        mods = ''
        if ops:
            last = ops[-1].split(None, 1)
            ops[-1] = last[0]
            mods = last[1] if len(last) > 1 else ''
        R = [regs_of(o) for o in ops]
        flat = lambda L: [x for l in L for x in l]
        self.rd, self.wr = [], []
        self.A = self.B = self.C = []
        self.passes = 0
        self.states = 1
        self.lds = False
        self.stdata = []
        if mn.startswith('v_mfma') or mn.startswith('v_smfmac'):
            self.kind = 'mfma'
            self.passes = 8 if '32x32' in mn else 4
            self.wr = R[0]
            self.A, self.B = R[1], R[2]
            if mn.startswith('v_smfmac'):
                self.C = R[0]
                self.B = R[2] + R[3]
            else:
                self.C = R[3]
            self.rd = self.A + self.B + self.C
        elif mn.startswith('ds_read'):
            self.kind = 'ds'
            self.wr, self.rd = R[0], flat(R[1:])
        elif mn.startswith('ds_'):
            self.kind = 'ds'
            self.rd = flat(R)
        elif mn.startswith('buffer_load'):
            self.kind = 'vm'
            if re.search(r'\blds\b', mods):
                self.lds = True
                self.rd = flat(R) + [('x', 'm0')]
            else:
                self.wr, self.rd = R[0], flat(R[1:])
        elif mn.startswith('buffer_'):
            self.kind = 'vm'
            self.rd = flat(R)
            if mn.endswith('x4') or mn.endswith('x3'):
                self.stdata = R[0]
        elif mn.startswith('v_permlane') and 'swap' in mn:
            self.kind = 'valu'
            self.wr = flat(R)
            self.rd = flat(R)
        elif mn.startswith('v_'):
            self.kind = 'valu'
            if mn == 'v_nop':
                pass
            else:
                self.wr = list(R[0])
                self.rd = flat(R[1:])
                if mn.startswith('v_fmac') or mn.startswith('v_writelane'):
                    self.rd = self.rd + R[0]
                if '_co_' in mn:
                    self.wr = R[0] + R[1]
                    self.rd = flat(R[2:])
        elif mn == 's_nop':
            self.kind = 'salu'
            self.states = int(ops[0], 0) + 1
        elif mn.startswith('s_load') or mn.startswith('s_memtime') or mn.startswith('s_memrealtime'):
            self.kind = 'smem'
            self.wr = R[0]
            self.rd = flat(R[1:])
        elif mn.startswith('s_'):
            self.kind = 'salu'
            if mn.startswith('s_cmp') or mn.startswith('s_cbranch') or mn in ('s_branch', 's_barrier', 's_waitcnt', 's_setprio', 's_endpgm', 's_sleep'):
                self.rd = flat(R)
            else:
                self.wr = list(R[0]) if R else []
                self.rd = flat(R[1:])
        else:
            raise ValueError('unknown instruction: ' + text)


class Stream:
    def __init__(self, parent=None):
        self.out = []
        self.path = list(parent.path) if parent else []
        self.nvm = parent.nvm if parent else 0
        self.nlg = parent.nlg if parent else 0
        self.vm_done = parent.vm_done if parent else 0
        self.lg_done = parent.lg_done if parent else 0
        self.pend = dict(parent.pend) if parent else {}
        self.max_lg = 0

    def raw(self, text):
        self.out.append(text)

    def label(self, name):
        self.out.append(name + ':')

    def comment(self, c):
        self.out.append('  ; ' + c)

    def _emit(self, ins):
        self.out.append('  ' + ins.text)
        self.path.append(ins)

    def wait(self, vm=None, lg=None):
        parts = []
        if vm is not None and vm >= self.vm_done:
            n = self.nvm - (vm + 1)
            n = min(n, 63)
            parts.append(f'vmcnt({n})')
            self.vm_done = self.nvm - n
        if lg is not None and lg >= self.lg_done:
            n = self.nlg - (lg + 1)
            n = min(n, 15)
            parts.append(f'lgkmcnt({n})')
            self.lg_done = self.nlg - n
        if parts:
            self._emit(I('s_waitcnt ' + ' '.join(parts)))

    def wait_all_vm(self):
        self._emit(I('s_waitcnt vmcnt(0)'))
        self.vm_done = self.nvm

    def wait_all_lg(self):
        self._emit(I('s_waitcnt lgkmcnt(0)'))
        self.lg_done = self.nlg

    def mark_vm(self):
        self.nvm += 1
        return self.nvm - 1

    def __call__(self, text):
        ins = I(text)
        vm = lg = None
        for r in ins.rd + ins.wr:
            p = self.pend.get(r)
            if p:
                if p[0] == 'vm' and p[1] >= self.vm_done:
                    vm = p[1] if vm is None else max(vm, p[1])
                if p[0] == 'lg' and p[1] >= self.lg_done:
                    lg = p[1] if lg is None else max(lg, p[1])
        self.wait(vm, lg)
        tok = None
        if ins.kind == 'ds':
            if self.nlg - self.lg_done >= 15:
                self.wait(lg=self.nlg - 12)
            tok = self.nlg
            self.nlg += 1
            for r in ins.wr:
                self.pend[r] = ('lg', tok)
        elif ins.kind == 'vm':
            assert self.nvm - self.vm_done < 62, 'too many outstanding vm ops'
            tok = self.nvm
            self.nvm += 1
            for r in ins.wr:
                self.pend[r] = ('vm', tok)
        self._emit(ins)
        return tok

    def text(self):
        return '\n'.join(self.out)


def check_path(path, name=''):
    probs = []
    n = len(path)

    def ov(a, b):
        return bool(set(a) & set(b))

    for i, p in enumerate(path):
        dist = 0
        for j in range(i + 1, min(n, i + 24)):
            c = path[j]
            need = 0
            why = ''
            vw = [r for r in p.wr if r[0] in 'va']
            sw = [r for r in p.wr if r[0] == 's' or r == ('x', 'vcc')]
            if p.kind == 'valu':
                if c.kind == 'mfma' and ov(vw, c.rd):
                    need, why = 2, 'valu->mfma'
                if p.mn.startswith(TRANS) and c.kind == 'valu' and not c.mn.startswith(TRANS) and ov(vw, c.rd):
                    need, why = max(need, 1), 'trans->valu'
                if c.mn.startswith(('v_readfirstlane', 'v_readlane')) and ov(vw, c.rd):
                    need, why = max(need, 1), 'valu->readlane'
                if c.mn.startswith('v_permlane') and ov(vw, c.rd):
                    need, why = max(need, 2), 'valu->permlane'
                if 'dpp' in c.text and ov(vw, c.rd):
                    need, why = max(need, 2), 'valu->dpp'
                if c.kind == 'valu' and ov(sw, c.rd):
                    need, why = max(need, 2), 'valu sgpr->valu'
                if c.kind == 'vm' and ov(sw, c.rd):
                    need, why = max(need, 5), 'valu sgpr->vmem'
            if p.kind == 'mfma':
                big = {8: 12, 4: 8}[p.passes]
                if c.kind == 'valu' and (ov(vw, c.rd) or ov(vw, c.wr)):
                    need, why = big, 'mfma->valu'
                if c.kind in ('ds', 'vm') and (ov(vw, c.rd) or ov(vw, c.wr)):
                    need, why = big, 'mfma->mem'
                if c.kind == 'mfma':
                    if ov(vw, c.A + c.B):
                        need, why = big, 'mfma->mfma AB'
                    elif ov(vw, c.C) and not (c.C == p.wr and c.passes == p.passes):
                        need, why = big - 2, 'mfma->mfma C partial'
                    elif ov(vw, c.wr) and not ov(vw, c.C):
                        need, why = big - 2, 'mfma->mfma WAW'
                if c.kind == 'valu' and ov(p.C, c.wr):
                    need, why = max(need, p.passes - 1), 'mfma C WAR'
            if p.kind == 'salu' and ('x', 'm0') in p.wr and c.lds:
                need, why = 1, 'm0->lds dma'
            if p.stdata and ov(p.stdata, c.wr):
                need, why = max(need, 2), 'store data WAR'
            if need > dist:
                probs.append(f'{name}: {why} needs {need} has {dist}: [{p.text}] -> [{c.text}]')
            dist += c.states
            if dist >= 20:
                break
    return probs
```

```python
import sys, struct, math
from asmlib import Stream, check_path, I

NAME = 'concat_heads__grouped_kv_mqa__linear_attn_block__prompt'
KERNEL = NAME + '_kernel'


def f32(x):
    return '0x%08x' % struct.unpack('<I', struct.pack('<f', x))[0]


DEF = dict(
    B0=1,
    MIDRATE=2,
    P2POLL=7,
    STAMP=0,
    PRIO='lvl',
    OUTFLAG='',
    FORCEFB=0,
    EARLYB=0,
    CPF=1,
)

WS_KV = 0
WS_PART = 0x20000
WS_OA = 0x100000
WS_OB = 0x300000
WS_F1 = 0x500000
WS_F2 = 0x510000
WS_F3 = 0x520000
WS_F4 = 0x540000
WS_STAMP = 0x560000
WS_SIZE = 0x5A0000
OOB = 0x40000000

L_RING = 0
L_X = 32768
L_W = 98304
L_SC0 = 81920
L_SC1 = 147456
L_NONCE = 16384

sB, sW, sTB, sHG = 's2', 's3', 's4', 's5'
XA, WQ, WKV, WOA, XB, WB, WOB, OUT, DBG, WS, CODE = [f's[{8+4*i}:{11+4*i}]' for i in range(11)]
SRD0 = dict(XA=8, WQ=12, WKV=16, WOA=20, XB=24, WB=28, WOB=32, OUT=36, DBG=40, WS=44, CODE=48)
sMASK = 's[52:53]'
sROT, sW1K, sXQ = 's55', 's57', 's56'
sT = [f's{i}' for i in range(58, 70)]
sF1, sF2, sF3, sF4, sPART, sPLD, sCNT, sOLD = 's70', 's71', 's72', 's73', 's74', 's75', 's76', 's77'
sCLK = 's[78:79]'
STAMP0 = 80

S = [16, 32]
O = [48, 64]
Q = [80, 84]
KF = [88, 92]
VA = [96, 104]
VB = [100, 108]
ACC = 112
BX, BW = 128, 132
PQ = 136
BX2, BW2 = 196, 200
RB = [140, 192]
BIG = 144
ACC2 = 208
(vL, vL16, vL0, vNONCE, vIDX, vAK, vAV, vWq, vWkv, vDx, vDwq, vDwkv, vDwo, vDkv, vT0) = range(1, 16)
vXq = [224, 225, 226, 227]
vXkv = [228, 229, 230, 231]
vWO = [232, 233, 234, 235]
(vOst, vOut, vRA, vRB, vEX, vEXp, vCB, vCBp, vP1, vP2, vP3, vPV) = range(236, 248)
vT = list(range(248, 256))
vPF = 0


def vr(b, n):
    return f'v[{b}:{b+n-1}]'


class Gen:
    def __init__(self, **kw):
        self.p = dict(DEF)
        self.p.update(kw)
        self.side = []
        self.nstamp = {}
        self.paths = []

    def stamp(self, st, k):
        if self.p['STAMP']:
            st.raw(f'  s_memrealtime s[{STAMP0+2*k}:{STAMP0+2*k+1}]')
            st.wait_all_lg()

    def poll_check(self, st, tag, vaddr, soff, srd=WS):
        st(f'v_cmp_ne_u32 vcc, v{vPV}, v{vNONCE}')
        st('s_nop 0')
        st(f's_cbranch_vccnz L_spin_{tag}')
        st.label(f'L_back_{tag}')
        self.side.append(f"""L_spin_{tag}:
  s_mov_b32 {sCNT}, 0
L_spinl_{tag}:
  s_sleep 1
  buffer_load_dword v{vPV}, v{vaddr}, {srd}, {soff} offen sc1
  s_add_u32 {sCNT}, {sCNT}, 1
  s_waitcnt vmcnt(0)
  v_cmp_ne_u32 vcc, v{vPV}, v{vNONCE}
  s_cmp_gt_u32 {sCNT}, 0x100000
  s_cbranch_scc1 L_back_{tag}
  s_cbranch_vccnz L_spinl_{tag}
  s_branch L_back_{tag}""")

    def dma(self, st, vaddr, srd, soff, m0expr, flags='', imm=0):
        if m0expr is not None:
            if m0expr[0] == 'w':
                st(f's_add_u32 m0, {sW1K}, {m0expr[1]}')
            else:
                st(f's_mov_b32 m0, {m0expr[1]}')
        pre = soff
        if isinstance(soff, list):
            for x in soff:
                st(x)
            pre = sT[0]
        elif m0expr is not None:
            st('s_nop 0')
        off = f' offset:{imm}' if imm else ''
        return st(f'buffer_load_dwordx4 v{vaddr}, {srd}, {pre} offen{off} {flags} lds'.replace('  ', ' '))

    def entry(self):
        e = Stream()
        if self.p['STAMP']:
            e.raw(f'  s_memrealtime s[{STAMP0}:{STAMP0+1}]')
        e(f's_cmp_ge_u32 {sB}, 256')
        e('s_cbranch_scc1 L_exit')
        e(f's_lshr_b32 {sHG}, {sB}, 5')
        e(f's_and_b32 s6, {sHG}, 1')
        e('s_lshl_b32 s6, s6, 3')
        e('s_add_u32 s6, s6, 16')
        e('s_load_dwordx2 s[8:9], s[0:1], 0')
        e('s_load_dwordx2 s[16:17], s[0:1], s6')
        e('s_load_dwordx2 s[12:13], s[0:1], 8')
        e('s_load_dwordx2 s[40:41], s[0:1], 72')
        e('s_load_dwordx2 s[44:45], s[0:1], 80')
        e('s_load_dwordx2 s[20:21], s[0:1], 32')
        e('s_load_dwordx2 s[24:25], s[0:1], 40')
        e('s_load_dwordx2 s[28:29], s[0:1], 48')
        e('s_load_dwordx2 s[32:33], s[0:1], 56')
        e('s_load_dwordx2 s[36:37], s[0:1], 64')
        if self.p['CPF']:
            e('s_getpc_b64 s[48:49]')
            e.label('L_pc')
            e.raw('  s_mov_b32 s50, L_codeend - L_pc')
            e('s_mov_b32 s51, 0x20000')
            e(f'v_lshlrev_b32 v{vT[0]}, 7, v0')
            e(f'buffer_load_dword v{vPV}, v{vT[0]}, {CODE}, 0 offen')
        e(f'v_lshrrev_b32 v{vT0}, 6, v0')
        e(f'v_and_b32 v{vL}, 63, v0')
        e(f'v_readfirstlane_b32 {sW}, v{vT0}')
        e(f's_and_b32 {sTB}, {sB}, 7')
        e(f's_lshl_b32 {sTB}, {sTB}, 2')
        e(f's_bfe_u32 s7, {sB}, 0x20003')
        e(f's_add_u32 {sTB}, {sTB}, s7')
        e(f's_lshl_b32 {sROT}, s7, 1')
        e(f's_add_u32 {sROT}, {sROT}, {sHG}')
        sizes = dict(XA=2097152, WQ=524288, WKV=16384, WOA=524288, XB=2097152, WB=1572864, WOB=524288,
                     OUT=4194304, DBG=256, WS=WS_SIZE)
        for k, sz in sizes.items():
            e(f's_mov_b32 s{SRD0[k]+2}, {sz}')
            e(f's_mov_b32 s{SRD0[k]+3}, 0x20000')
        e(f'v_lshlrev_b32 v{vL16}, 4, v{vL}')
        e(f's_lshl_b32 {sW1K}, {sW}, 10')
        e(f's_cmp_lg_u32 {sW}, 0')
        e('s_cbranch_scc1 L_notw0')
        return e

    def setup(self, st, role):
        t = vT
        st(f's_mov_b32 s52, 0x0000ffff')
        st(f's_mov_b32 s53, 0x0000ffff')
        st(f'v_min_u32 v{vL0}, 1, v{vL}')
        st(f'v_lshlrev_b32 v{vL0}, 30, v{vL0}')
        st(f'v_mov_b32 v{vIDX}, 0xdddd')
        tt, hp, H = sT[4], sT[5], sT[6]
        st(f's_and_b32 {tt}, {sW}, 1')
        st(f's_bfe_u32 {hp}, {sW}, 0x10001')
        st(f's_lshl_b32 {H}, {sHG}, 2')
        st(f's_lshl_b32 {sT[0]}, {hp}, 1')
        st(f's_add_u32 {H}, {H}, {sT[0]}')
        if role:
            st(f's_add_u32 {H}, {H}, 1')
        h, l31, l15 = t[0], t[1], t[2]
        st(f'v_lshrrev_b32 v{h}, 5, v{vL}')
        st(f'v_and_b32 v{l31}, 31, v{vL}')
        st(f'v_and_b32 v{l15}, 15, v{vL}')
        st(f'v_bfe_u32 v{t[3]}, v{vL}, 1, 3')
        st(f'v_xor_b32 v{t[3]}, v{t[3]}, v{h}')
        st(f'v_lshlrev_b32 v{t[3]}, 4, v{t[3]}')
        st(f'v_lshl_add_u32 v{t[3]}, v{l31}, 7, v{t[3]}')
        st(f's_lshl_b32 {sT[0]}, {tt}, 12')
        st(f's_add_u32 {sT[0]}, {sT[0]}, {L_X}')
        st(f'v_add_u32 v{vXq[0]}, {sT[0]}, v{t[3]}')
        for ks in range(1, 4):
            st(f'v_xor_b32 v{vXq[ks]}, {ks << 5}, v{vXq[0]}')
        r, c = t[4], t[5]
        st(f'v_bfe_u32 v{r}, v{vL}, 2, 2')
        st(f'v_bfe_u32 v{c}, v{vL}, 4, 1')
        st(f'v_lshlrev_b32 v{c}, 1, v{c}')
        st(f'v_bfe_u32 v{t[6]}, v{vL}, 1, 1')
        st(f'v_or_b32 v{c}, v{c}, v{t[6]}')
        st(f'v_bfe_u32 v{t[6]}, v{vL}, 3, 1')
        st(f'v_lshl_or_b32 v{c}, v{t[6]}, 2, v{c}')
        st(f'v_lshlrev_b32 v{c}, 4, v{c}')
        st(f'v_and_b32 v{t[6]}, 1, v{vL}')
        st(f'v_lshl_or_b32 v{c}, v{t[6]}, 3, v{c}')
        st(f'v_lshl_add_u32 v{t[6]}, v{h}, 3, v{r}')
        st(f'v_lshl_add_u32 v{c}, v{t[6]}, 7, v{c}')
        st(f'v_add_u32 v{c}, {L_W}, v{c}')
        st(f's_lshl_b32 {sT[0]}, {hp}, 6')
        st(f'v_xor_b32 v{vWq}, {sT[0]}, v{c}')
        if role:
            st(f'v_xor_b32 v{vWkv}, 64, v{c}')
        else:
            st(f'v_mov_b32 v{vWkv}, v{c}')

    def setup2(self, st, role):
        t = vT
        tt, hp, H = sT[4], sT[5], sT[6]
        h, l31, l15 = t[0], t[1], t[2]
        st(f's_lshl_b32 {sT[0]}, {hp}, 13')
        for ks in range(4):
            st(f'v_add_u32 v{vXkv[ks]}, {sT[0]}, v{vXq[ks]}')
        if role:
            st(f'v_add_u32 v{vAK}, 2048, v{vL16}')
        else:
            st(f'v_mov_b32 v{vAK}, v{vL16}')
        st(f'v_lshl_add_u32 v{t[3]}, v{h}, 4, v{l15}')
        st(f'v_lshlrev_b32 v{t[3]}, 4, v{t[3]}')
        st(f'v_add_u32 v{vAV}, {1024 + 2048*role}, v{t[3]}')
        r, s = t[4], t[5]
        st(f'v_lshrrev_b32 v{r}, 3, v{vL}')
        st(f'v_and_b32 v{s}, 7, v{vL}')
        st(f's_lshl_b32 {sT[1]}, {sW}, 3')
        st(f'v_add_u32 v{t[6]}, {sT[1]}, v{r}')
        st(f'v_bfe_u32 v{t[7]}, v{t[6]}, 1, 3')
        st(f'v_xor_b32 v{t[7]}, v{t[7]}, v{s}')
        st(f'v_lshlrev_b32 v{t[7]}, 4, v{t[7]}')
        st(f'v_lshl_add_u32 v{t[7]}, v{t[6]}, 10, v{t[7]}')
        st(f's_lshr_b32 {sT[0]}, {sTB}, 1')
        st(f's_lshl_b32 {sT[0]}, {sT[0]}, 17')
        st(f'v_add_u32 v{vDx}, {sT[0]}, v{t[7]}')
        st(f'v_bfe_u32 v{t[7]}, v{vL}, 4, 1')
        st(f'v_lshlrev_b32 v{t[7]}, 2, v{t[7]}')
        st(f'v_xor_b32 v{t[7]}, v{t[7]}, v{s}')
        st(f'v_mul_u32_u24 v{vDwq}, 3072, v{t[6]}')
        st(f's_lshl_b32 {sT[2]}, {sHG}, 7')
        st(f'v_add_u32 v{vDwq}, {sT[2]}, v{vDwq}')
        st(f'v_lshrrev_b32 v{vDwkv}, 2, v{t[7]}')
        st(f'v_lshl_add_u32 v{vDwkv}, v{vDwkv}, 10, v{vDwq}')
        st(f'v_and_b32 v{vT0}, 3, v{t[7]}')
        st(f'v_lshl_add_u32 v{vDwkv}, v{vT0}, 4, v{vDwkv}')
        st(f's_and_b32 {sT[0]}, {sTB}, 1')
        st(f's_lshl_b32 {sXQ}, {sT[0]}, 13')
        st(f's_lshl_b32 {sT[0]}, {sT[0]}, 6')
        st(f's_add_u32 {sT[0]}, {sT[0]}, 1024')
        st(f'v_add_u32 v{vDwkv}, {sT[0]}, v{vDwkv}')
        st(f'v_lshl_add_u32 v{vDwq}, v{t[7]}, 4, v{vDwq}')
        st(f'v_bfe_u32 v{t[7]}, v{vL}, 4, 2')
        st(f'v_lshlrev_b32 v{t[7]}, 1, v{t[7]}')
        st(f'v_xor_b32 v{t[7]}, v{t[7]}, v{s}')
        st(f'v_lshlrev_b32 v{t[7]}, 4, v{t[7]}')
        st(f'v_lshl_add_u32 v{t[7]}, v{t[6]}, 10, v{t[7]}')
        st(f'v_add_u32 v{vDwo}, {sT[2]}, v{t[7]}')
        st(f'v_add_u32 v{vDkv}, {sW1K}, v{vL16}')
        st(f'v_bfe_u32 v{t[3]}, v{vL}, 2, 3')
        st(f'v_lshl_add_u32 v{t[6]}, v{h}, 4, v{t[3]}')
        st(f'v_and_b32 v{t[3]}, 6, v{t[3]}')
        st(f'v_bfe_u32 v{t[7]}, v{vL}, 1, 1')
        st(f'v_or_b32 v{t[3]}, v{t[3]}, v{t[7]}')
        st(f'v_lshlrev_b32 v{t[3]}, 4, v{t[3]}')
        st(f'v_and_b32 v{t[7]}, 1, v{vL}')
        st(f'v_lshl_or_b32 v{t[3]}, v{t[7]}, 3, v{t[3]}')
        st(f'v_lshl_add_u32 v{t[3]}, v{t[6]}, 7, v{t[3]}')
        st(f'v_add_u32 v{vWO[0]}, {L_W if role else L_X}, v{t[3]}')
        for c in range(1, 4):
            st(f'v_xor_b32 v{vWO[c]}, {c << 5}, v{vWO[0]}')
        st(f'v_bfe_u32 v{t[3]}, v{vL}, 4, 1')
        st(f'v_lshlrev_b32 v{t[3]}, 14, v{t[3]}')
        st(f'v_lshl_add_u32 v{t[3]}, v{h}, 8, v{t[3]}')
        st(f'v_lshl_add_u32 v{t[3]}, v{l15}, 4, v{t[3]}')
        st(f's_lshl_b32 {sT[0]}, {sTB}, 16')
        st(f's_lshl_b32 {sT[1]}, {tt}, 15')
        st(f's_add_u32 {sT[1]}, {sT[1]}, {sT[0]}')
        st(f's_lshl_b32 {sT[3]}, {H}, 9')
        st(f's_add_u32 {sT[1]}, {sT[1]}, {sT[3]}')
        st(f'v_add_u32 v{vOst}, {sT[1]}, v{t[3]}')
        st(f's_and_b32 {sT[1]}, {sW}, 3')
        st(f's_lshl_b32 {sOLD}, {sT[1]}, 14')
        st(f's_add_u32 {sOLD}, {sOLD}, {sT[0]}')
        st(f's_add_u32 {sOLD}, {sOLD}, {WS_OA if role else WS_OB}')
        st(f's_lshl_b32 {sT[0]}, {sTB}, 17')
        st(f's_lshl_b32 {sT[1]}, {sT[1]}, 15')
        st(f's_add_u32 {sT[0]}, {sT[0]}, {sT[1]}')
        st(f's_add_u32 {sT[0]}, {sT[0]}, {sT[2]}')
        if not role:
            st(f's_add_u32 {sT[0]}, {sT[0]}, 1024')
        st(f'v_bfe_u32 v{t[3]}, v{vL}, 4, 1')
        st(f'v_lshlrev_b32 v{t[3]}, 5, v{t[3]}')
        st(f'v_lshl_add_u32 v{t[3]}, v{h}, 4, v{t[3]}')
        st(f'v_lshl_add_u32 v{t[3]}, v{l15}, 11, v{t[3]}')
        st(f'v_add_u32 v{vOut}, {sT[0]}, v{t[3]}')
        st(f's_lshl_b32 {sT[0]}, {sW}, 11')
        st(f'v_add_u32 v{vEX}, {sT[0]}, v{vL16}')
        st(f'v_add_u32 v{vEX}, {L_SC0}, v{vEX}')
        st(f'v_add_u32 v{vEXp}, {L_SC1 - L_SC0}, v{vEX}')
        st(f's_mul_i32 {sT[0]}, {sW}, 3072')
        st(f'v_add_u32 v{vCB}, {sT[0]}, v{vL16}')
        if role:
            st(f'v_subrev_u32 v{vCBp}, {4*3072}, v{vCB}')
        else:
            st(f'v_add_u32 v{vCBp}, {4*3072}, v{vCB}')
        if role:
            st(f's_lshl_b32 {sT[0]}, {tt}, 8')
            st(f'v_xor_b32 v{vRA}, {sT[0]}, v{vL16}')
            st(f'v_add_u32 v{vRA}, {L_SC0}, v{vRA}')
            st(f'v_add_u32 v{vRB}, 8192, v{vRA}')
            st(f's_and_b32 {sT[0]}, {sTB}, 1')
            st(f's_lshl_b32 {sT[0]}, {sT[0]}, 1')
            st(f's_lshl_b32 {sT[1]}, {sHG}, 2')
            st(f's_add_u32 {sT[0]}, {sT[0]}, {sT[1]}')
            st(f's_add_u32 {sT[0]}, {sT[0]}, {tt}')
            st(f's_lshl_b32 {sT[0]}, {sT[0]}, 4')
            st(f's_lshr_b32 {sT[1]}, {sTB}, 1')
            st(f's_add_u32 {sT[0]}, {sT[0]}, {sT[1]}')
            st(f's_lshl_b32 {sPART}, {sT[0]}, 10')
            st(f's_add_u32 {sPART}, {sPART}, {WS_PART}')
            st(f's_lshl_b32 {sF2}, {sT[0]}, 6')
            st(f's_add_u32 {sF2}, {sF2}, {WS_F2}')
            st(f's_cmp_ge_u32 {sW}, 6')
            st(f's_cselect_b32 {sT[0]}, {OOB}, 0')
            st(f'v_or_b32 v{vP1}, {sT[0]}, v{vL16}')
            st(f'v_or_b32 v{vPF}, {sT[0]}, v{vL0}')
        st(f's_lshl_b32 {sPLD}, {H}, 14')
        st(f's_add_u32 {sPLD}, {sPLD}, {WS_PART}')
        st(f's_lshl_b32 {sT[0]}, {H}, 10')
        st(f's_add_u32 {sT[0]}, {sT[0]}, {WS_F2}')
        st(f'v_lshl_add_u32 v{vP2}, v{l15}, 6, {sT[0]}')
        st(f's_lshl_b32 {sT[0]}, {sTB}, 6')
        st(f's_lshl_b32 {sT[1]}, {tt}, 5')
        st(f's_add_u32 {sT[1]}, {sT[1]}, {sT[0]}')
        st(f's_add_u32 {sT[1]}, {sT[1]}, {H}')
        st(f's_lshl_b32 {sT[1]}, {sT[1]}, 6')
        st(f's_add_u32 {sF3}, {sT[1]}, {WS_F3}')
        st(f's_add_u32 {sF4}, {sT[1]}, {WS_F4}')
        st(f's_lshl_b32 {sT[1]}, {hp}, 5')
        st(f's_add_u32 {sT[1]}, {sT[1]}, {sT[0]}')
        st(f's_lshl_b32 {sT[1]}, {sT[1]}, 6')
        st(f's_add_u32 {sT[1]}, {sT[1]}, {WS_F4 if role else WS_F3}')
        st(f'v_lshl_add_u32 v{vP3}, v{l31}, 6, {sT[1]}')
        if not role:
            st(f's_lshl_b32 {sT[0]}, {sW}, 13')
            st(f's_add_u32 {sT[0]}, {sT[0]}, {WS_F1}')
            st(f'v_lshl_add_u32 v{vP1}, v{vL}, 7, {sT[0]}')
        st(f'v_and_b32 v{t[3]}, 27, v{vL}')
        st(f'v_cmp_eq_u32 vcc, 16, v{t[3]}')
        st(f'v_mov_b32 v{t[4]}, 0x3f803f80')
        st(f'v_mov_b32 v{t[5]}, 0')
        st(f'v_cndmask_b32 v{VA[0]}, v{t[5]}, v{t[4]}, vcc')
        regs = [b + i for b in VA + VB + ([RB[0]] if role else []) for i in range(4)]
        for x in regs[1:]:
            st(f'v_mov_b32 v{x}, v{VA[0]}')
        for i in range(32):
            st(f'v_mov_b32 v{O[0]+i}, 0')

    def qstage(self, st, t):
        seq = [(u, ks) for u in range(2) for ks in range(4)]
        buf = lambda i: BIG + 8 * (i % 8)

        def rd(i):
            u, ks = seq[i]
            b = buf(i)
            off = 16384 * t + 8192 * u
            st(f'ds_read_b128 {vr(b,4)}, v{vXq[ks]} offset:{off}')
            st(f'ds_read_b64_tr_b16 {vr(b+4,2)}, v{vWq} offset:{off + 16*ks*128}')
            st(f'ds_read_b64_tr_b16 {vr(b+6,2)}, v{vWq} offset:{off + (16*ks+4)*128}')
        for i in range(4):
            rd(i)
        for i in range(8):
            b = buf(i)
            c = '0' if (t == 0 and i == 0) else vr(ACC, 16)
            st(f'v_mfma_f32_32x32x16_bf16 {vr(ACC,16)}, {vr(b+4,4)}, {vr(b,4)}, {c}')
            if i + 4 < 8:
                rd(i + 4)

    def qfinish(self, st):
        st('s_nop 7')
        st('s_nop 3')
        c = f32(0.25 * math.log2(math.e))
        for i in range(16):
            st(f'v_mul_f32 v{ACC+i}, {c}, v{ACC+i}')
        for i in range(8):
            st(f'v_cvt_pk_bf16_f32 v{Q[0]+i}, v{ACC+2*i}, v{ACC+2*i+1}')

    def bchunk_dma(self, c):
        slot = c % 3
        ph = [f's_add_u32 {sT[1]}, {sROT}, {c}', f's_and_b32 {sT[1]}, {sT[1]}, 7']
        return [
            lambda st: self.dma(st, vDx, XB, ph + [f's_lshl_b32 {sT[0]}, {sT[1]}, 7'], ('w', L_X + 16384*slot)),
            lambda st: self.dma(st, vDx, XB, ph + [f's_lshl_b32 {sT[0]}, {sT[1]}, 7', f's_add_u32 {sT[0]}, {sT[0]}, 65536'], ('w', L_X + 16384*slot + 8192)),
            lambda st: self.dma(st, vDwkv, WB, ph + [f's_mul_i32 {sT[0]}, {sT[1]}, {64*3072}'], ('w', L_W + 16384*slot)),
            lambda st: self.dma(st, vDwq, WB, ph + [f's_mul_i32 {sT[0]}, {sT[1]}, {64*3072}'], ('w', L_W + 16384*slot + 8192)),
        ]

    def front_w0(self, e):
        st = Stream(e)
        t = vT
        st(f'v_and_b32 v{t[0]}, 15, v{vL}')
        st(f'v_lshrrev_b32 v{t[1]}, 4, v{vL}')
        st(f's_lshl_b32 {sT[0]}, {sTB}, 6')
        st(f's_lshr_b32 {sT[1]}, {sHG}, 1')
        st(f's_lshl_b32 {sT[2]}, {sT[1]}, 4')
        st(f's_add_u32 {sT[0]}, {sT[0]}, {sT[2]}')
        st(f's_lshl_b32 {sT[0]}, {sT[0]}, 10')
        st(f'v_lshlrev_b32 v{t[2]}, 4, v{t[1]}')
        st(f'v_lshl_add_u32 v{t[2]}, v{t[0]}, 10, v{t[2]}')
        st(f'v_and_b32 v{t[3]}, 16, v{vL}')
        st(f'v_lshlrev_b32 v{t[3]}, 3, v{t[3]}')
        st(f'v_xor_b32 v{t[3]}, v{t[3]}, v{vL16}')
        st.wait_all_lg()
        toks = []
        for ks in range(16):
            if ks % 4 == 0:
                st(f's_mov_b32 m0, {ks*1024}')
                st(f's_mov_b32 {sT[3]}, {ks*1024}')
            st(f'buffer_load_dwordx4 {vr(BIG+4*ks,4)}, v{t[2]}, {XA}, {sT[0]} offen offset:{64*ks}'.replace(' offset:0', ''))
            off = (ks % 4) * 1024
            toks.append(st(f'buffer_load_dwordx4 v{t[3]}, {WKV}, {sT[3]} offen offset:{off} lds'.replace(' offset:0', '')))
        st('s_barrier')
        st(f'v_mov_b32 v{vT0}, 0')
        a0, a1 = ACC2, ACC2 + 1
        sto = ACC2 + 2
        st(f'v_and_b32 v{t[4]}, 1, v{t[1]}')
        st(f'v_lshl_add_u32 v{t[5]}, v{t[1]}, 1, v{t[4]}')
        st(f'v_lshlrev_b32 v{t[5]}, 7, v{t[5]}')
        st(f'v_lshl_add_u32 v{a0}, v{t[0]}, 3, v{t[5]}')
        st(f'v_xor_b32 v{a1}, 128, v{a0}')
        st(f'v_lshrrev_b32 v{t[5]}, 1, v{t[1]}')
        st(f's_lshl_b32 {sT[7]}, {sTB}, 1')
        st(f's_lshr_b32 {sT[2]}, {sT[1]}, 1')
        st(f's_add_u32 {sT[7]}, {sT[7]}, {sT[2]}')
        st(f's_lshl_b32 {sT[7]}, {sT[7]}, 11')
        st(f's_and_b32 {sT[8]}, {sT[1]}, 1')
        st(f's_lshl_b32 {sF1}, {sTB}, 3')
        st(f's_add_u32 {sF1}, {sF1}, {sHG}')
        st(f's_lshl_b32 {sF1}, {sF1}, 7')
        st(f's_add_u32 {sF1}, {sF1}, {WS_F1}')
        st(f's_bitcmp1_b32 {sHG}, 0')
        st('s_cbranch_scc1 L_isV')
        acc = ACC2 + 4
        base_state = st
        ends = []
        for isV in (0, 1):
            b = Stream(base_state)
            if isV:
                b.label('L_isV')
                b(f'v_lshlrev_b32 v{sto}, 3, v{t[4]}')
                b(f'v_lshl_add_u32 v{sto}, v{t[5]}, 8, v{sto}')
                b(f'v_lshl_add_u32 v{sto}, v{t[0]}, 4, v{sto}')
                b(f's_lshl_b32 {sT[8]}, {sT[8]}, 9')
                b(f's_add_u32 {sT[8]}, {sT[8]}, 1024')
            else:
                b(f'v_lshlrev_b32 v{sto}, 3, v{t[5]}')
                b(f'v_lshl_add_u32 v{sto}, v{t[4]}, 9, v{sto}')
                b(f'v_lshl_add_u32 v{sto}, v{t[0]}, 4, v{sto}')
                b(f's_lshl_b32 {sT[8]}, {sT[8]}, 8')
            b(f's_add_u32 {sT[7]}, {sT[7]}, {sT[8]}')
            wf = lambda ks: S[0] + 4 * (ks % 8)

            def rd(ks):
                b.wait(vm=toks[ks])
                b(f'ds_read_b64_tr_b16 {vr(wf(ks),2)}, v{a0} offset:{1024*ks}')
                b(f'ds_read_b64_tr_b16 {vr(wf(ks)+2,2)}, v{a1} offset:{1024*ks}')
            D = 2
            for ks in range(D):
                rd(ks)
            for ks in range(16):
                if ks + D < 16:
                    rd(ks + D)
                x, wv = vr(BIG + 4*ks, 4), vr(wf(ks), 4)
                c = '0' if ks == 0 else vr(acc, 4)
                A_, B_ = (x, wv) if isV else (wv, x)
                b(f'v_mfma_f32_16x16x32_bf16 {vr(acc,4)}, {A_}, {B_}, {c}')
            if not isV:
                b('s_branch L_kvdone')
            ends.append(b)
        j = Stream(ends[1])
        j.label('L_kvdone')
        j('s_nop 7')
        j(f'v_cvt_pk_bf16_f32 v{acc}, v{acc}, v{acc+1}')
        j(f'v_cvt_pk_bf16_f32 v{acc+1}, v{acc+2}, v{acc+3}')
        tok = j(f'buffer_store_dwordx2 {vr(acc,2)}, v{sto}, {WS}, {sT[7]} offen sc1')
        j(f'buffer_load_dword v{vNONCE}, v{vT0}, {DBG}, 0 offen sc1')
        self.stamp(j, 1)
        self.setup(j, 0)
        j(f'v_cmp_eq_u32 vcc, 0, v{vNONCE}')
        j('s_nop 0')
        j('s_cbranch_vccnz L_spin_n')
        j.label('L_back_n')
        self.side.append(f"""L_spin_n:
  s_mov_b32 {sCNT}, 0
L_spinl_n:
  buffer_load_dword v{vNONCE}, v{vT0}, {DBG}, 0 offen sc1
  s_add_u32 {sCNT}, {sCNT}, 1
  s_waitcnt vmcnt(0)
  v_cmp_eq_u32 vcc, 0, v{vNONCE}
  s_cmp_gt_u32 {sCNT}, 0x100000
  s_cbranch_scc1 L_back_n
  s_cbranch_vccnz L_spinl_n
  s_branch L_back_n""")
        j.wait(vm=tok)
        j(f'buffer_store_dword v{vNONCE}, v{vL0}, {WS}, {sF1} offen sc1')
        j(f'ds_write_b32 v{vT0}, v{vNONCE} offset:{L_NONCE}')
        self.stamp(j, 2)
        j.wait_all_lg()
        for t_ in range(4):
            j('s_barrier')
            if t_ == 3:
                j(f'buffer_load_dword v{vPV}, v{vP1}, {WS}, 0 offen sc1')
            self.qstage(j, t_)
            if t_ == 0:
                self.setup2(j, 0)
        self.stamp(j, 3)
        self.poll_check(j, 'p1a', vP1, '0')
        kvt = []
        for i in range(24):
            if i % 4 == 0:
                j(f's_mov_b32 m0, {i*1024}')
                j(f's_mov_b32 {sT[0]}, {WS_KV + i*1024}')
            off = (i % 4) * 1024
            kvt.append(j(f'buffer_load_dwordx4 v{vL16}, {WS}, {sT[0]} offen offset:{off} sc1 lds'.replace(' offset:0', '')))
        self.qfinish(j)
        j.wait(vm=kvt[15])
        self.paths.append(('w0K', ends[0].path + j.path[len(ends[1].path):]))
        body = '\n'.join([st.text(), ends[0].text(), ends[1].text(), j.text()])
        return body, j

    def front_w123(self, e):
        st = Stream(e)
        st.label('L_notw0')
        st(f's_cmp_ge_u32 {sW}, 4')
        st('s_cbranch_scc1 L_role1')
        st(f's_memrealtime {sCLK}')
        st(f'v_min_u32 v{vL0}, 1, v{vL}')
        st(f'v_lshlrev_b32 v{vL0}, 30, v{vL0}')
        st(f's_lshl_b32 {sT[0]}, {sB}, 2')
        st(f's_add_u32 {sT[0]}, {sT[0]}, {sW}')
        st(f's_cmp_eq_u32 {sT[0]}, 1')
        st(f's_cselect_b32 {sT[0]}, 0, {OOB}')
        st(f'v_or_b32 v{vT[1]}, {sT[0]}, v{vL0}')
        st.wait_all_lg()
        st('s_or_b32 s78, s78, 1')
        st(f'v_mov_b32 v{vNONCE}, s78')
        st(f'buffer_store_dword v{vNONCE}, v{vT[1]}, {DBG}, 0 offen sc1')
        st('s_barrier')
        self.setup(st, 0)
        self.setup2(st, 0)
        st(f'v_mov_b32 v{vT0}, 0')
        for t_ in range(4):
            st('s_barrier')
            if t_ == 0:
                st(f'ds_read_b32 v{vNONCE}, v{vT0} offset:{L_NONCE}')
            if t_ == 3:
                st(f'buffer_load_dword v{vPV}, v{vP1}, {WS}, 0 offen sc1')
            self.qstage(st, t_)
        self.qfinish(st)
        st.wait_all_lg()
        st('s_branch L_main0')
        return st

    def front_role1(self, e):
        st = Stream(e)
        t = vT
        st.label('L_role1')
        dx, dw = ACC2, ACC2 + 1
        st(f'v_lshrrev_b32 v{t[0]}, 3, v{vL}')
        st(f'v_and_b32 v{t[1]}, 7, v{vL}')
        st(f's_sub_u32 {sT[7]}, {sW}, 4')
        st(f's_lshl_b32 {sT[8]}, {sT[7]}, 10')
        st(f's_lshl_b32 {sT[7]}, {sT[7]}, 3')
        st(f'v_add_u32 v{t[0]}, {sT[7]}, v{t[0]}')
        st(f'v_bfe_u32 v{t[2]}, v{t[0]}, 1, 3')
        st(f'v_xor_b32 v{t[2]}, v{t[2]}, v{t[1]}')
        st(f'v_lshlrev_b32 v{t[2]}, 4, v{t[2]}')
        st(f'v_lshl_add_u32 v{t[2]}, v{t[0]}, 10, v{t[2]}')
        st(f's_lshl_b32 {sT[0]}, {sTB}, 16')
        st(f'v_add_u32 v{dx}, {sT[0]}, v{t[2]}')
        st(f'v_bfe_u32 v{t[2]}, v{vL}, 4, 1')
        st(f'v_lshlrev_b32 v{t[2]}, 2, v{t[2]}')
        st(f'v_xor_b32 v{t[2]}, v{t[2]}, v{t[1]}')
        st(f'v_lshlrev_b32 v{t[2]}, 4, v{t[2]}')
        st(f'v_lshl_add_u32 v{t[2]}, v{t[0]}, 10, v{t[2]}')
        st(f's_lshl_b32 {sT[0]}, {sHG}, 7')
        st(f'v_add_u32 v{dw}, {sT[0]}, v{t[2]}')
        self.setup(st, 1)
        st.wait_all_lg()
        st('s_barrier')
        last = {}

        def issue(t_):
            for u in range(2):
                st(f's_add_u32 {sT[9]}, {sROT}, {2*t_+u}')
                st(f's_and_b32 {sT[9]}, {sT[9]}, 7')
                for half in range(2):
                    st(f's_add_u32 m0, {sT[8]}, {L_X + 16384*t_ + 8192*u + 4096*half}')
                    st(f's_lshl_b32 {sT[10]}, {sT[9]}, 7' if half == 0 else f's_add_u32 {sT[10]}, {sT[10]}, 32768')
                    st(f'buffer_load_dwordx4 v{dx}, {XA}, {sT[10]} offen lds')
                for half in range(2):
                    st(f's_add_u32 m0, {sT[8]}, {L_W + 16384*t_ + 8192*u + 4096*half}')
                    st(f's_lshl_b32 {sT[10]}, {sT[9]}, 16' if half == 0 else f's_add_u32 {sT[10]}, {sT[10]}, 32768')
                    last[t_] = st(f'buffer_load_dwordx4 v{dw}, {WQ}, {sT[10]} offen lds')
        issue(0)
        issue(1)
        self.setup2(st, 1)
        st(f'v_mov_b32 v{vT0}, 0')
        issue(2)
        for t_ in range(4):
            st.wait(vm=last[t_])
            st('s_barrier')
            if t_ == 0:
                issue(3)
                st(f'ds_read_b32 v{vNONCE}, v{vT0} offset:{L_NONCE}')
            self.qstage(st, t_)
        self.qfinish(st)
        for i in range(4):
            st(f'v_mov_b32 v{RB[1]+i}, v{RB[0]}')
        st.wait_all_lg()
        return st

    def phi(self, regs, tmp):
        out = []
        n = len(regs)
        for i0 in range(0, n, 4):
            g = regs[i0:i0+4]

            def blk(st, g=g):
                for k, a in enumerate(g):
                    st(f'v_mul_f32 v{tmp+k}, {f32(math.log2(math.e))}, v{a}')
                for k, a in enumerate(g):
                    st(f'v_exp_f32_e64 v{tmp+k}, v{tmp+k} clamp')
                for k, a in enumerate(g):
                    st(f'v_max_f32 v{a}, 0, v{a}')
                for k, a in enumerate(g):
                    st(f'v_add_f32 v{a}, {f32(1e-6)}, v{a}')
                for k, a in enumerate(g):
                    st(f'v_add_f32 v{a}, v{a}, v{tmp+k}')
            out.append(blk)
        return out

    def main(self, st, role):
        p = self.p
        B0 = p['B0']
        ev = {}
        mf = {}
        bars = {}
        tok = {}

        def at(n, pos, f):
            ev.setdefault((n, pos), []).append(f)

        def save(key, f):
            def g(st):
                tok[key] = f(st)
            return g

        for s in range(16):
            bars.setdefault(4*s, [])
        pre = st.mark_vm()
        for r in list(st.pend):
            if st.pend[r][0] == 'vm':
                if st.pend[r][1] >= st.vm_done:
                    st.pend[r] = ('vm', pre)
                else:
                    del st.pend[r]
        st.vm_done = pre
        assert B0 >= 1
        for c in range(3, 16):
            at(4*(c-3), 2, save(('kv', c), lambda st, c=c: self.dma(
                st, vDkv, WS, [f's_mov_b32 {sT[0]}, {WS_KV + c*8192}'], ('w', L_RING + (c % 4)*8192), 'sc1')))
            bars[4*(c-1)].append(lambda st, c=c: st.wait(vm=tok[('kv', c)]))
        bars[4].insert(0, lambda st: st.wait(vm=pre))
        if role == 0:
            at(3, 3, lambda st: self.poll_check(st, 'p1b', vP1, '0'))
        for c in range(8):
            s_i = B0 + c - 2
            th = self.bchunk_dma(c)
            th[3] = save(('b', c), th[3])
            if s_i < 0:
                for k in range(4):
                    at(0, 3, th[k]) if c == 0 else at(1, 3, th[k])
            else:
                for k in range(4):
                    at(4*s_i + k, 3, th[k])
            bars[4*(B0+c)].append(lambda st, c=c: st.wait(vm=tok[('b', c)]))
            slot = c % 3
            for ks in range(4):
                n = 4*(B0+c) + ks

                def rd(st, ks=ks, slot=slot):
                    st(f'ds_read_b128 {vr(BX,4)}, v{vXkv[ks]} offset:{16384*slot}')
                    st(f'ds_read_b64_tr_b16 {vr(BW,2)}, v{vWkv} offset:{16384*slot + 16*ks*128}')
                    st(f'ds_read_b64_tr_b16 {vr(BW+2,2)}, v{vWkv} offset:{16384*slot + (16*ks+4)*128}')
                at(n, 0, rd)
                cc = '0' if (c == 0 and ks == 0) else vr(ACC, 16)
                mf.setdefault(n, []).append(lambda st, cc=cc: st(
                    f'v_mfma_f32_32x32x16_bf16 {vr(ACC,16)}, {vr(BX,4)}, {vr(BW,4)}, {cc}'))
            for i in range(2):
                ks = 2*role + i
                n = 4*(B0+c) + 2*i + 1

                def rdq(st, ks=ks, slot=slot):
                    st(f'ds_read_b128 {vr(BX2,4)}, v{vXq[ks]} offset:{16384*slot}')
                    st(f'ds_read_b64_tr_b16 {vr(BW2,2)}, v{vWq} offset:{16384*slot + 8192 + 16*ks*128}')
                    st(f'ds_read_b64_tr_b16 {vr(BW2+2,2)}, v{vWq} offset:{16384*slot + 8192 + (16*ks+4)*128}')
                at(n - 1, 3, rdq)
                cc = '0' if (c == 0 and i == 0) else vr(ACC2, 16)
                mf.setdefault(n, []).insert(0, lambda st, cc=cc: st(
                    f'v_mfma_f32_32x32x16_bf16 {vr(ACC2,16)}, {vr(BW2,4)}, {vr(BX2,4)}, {cc}'))
        at(0, 2, lambda st: [st(f'v_add_u32 v{vXq[2*role+i]}, {sXQ}, v{vXq[2*role+i]}') for i in range(2)])
        nE = 4*(B0+8)
        send = ACC2 + (0 if role else 8)
        keep = ACC2 + (8 if role else 0)

        def qsend(st):
            st(f'ds_write_b128 v{vEXp}, {vr(send,4)}')
            st(f'ds_write_b128 v{vEXp}, {vr(send+4,4)} offset:1024')
        at(nE, 3, qsend)
        accs = list(range(ACC, ACC+16))
        if role == 0:
            ph = self.phi(accs, vT[0])
            at(nE, 3, ph[0]); at(nE, 4, ph[1]); at(nE+1, 1, ph[2]); at(nE+1, 2, ph[3])

        def pack(st):
            for i in range(8):
                st(f'v_cvt_pk_bf16_f32 v{ACC+i}, v{ACC+2*i}, v{ACC+2*i+1}')
            st(f'ds_write_b128 v{vEX}, {vr(ACC,4)}')
            st(f'ds_write_b128 v{vEX}, {vr(ACC+4,4)} offset:1024')
        at(nE+1, 3, pack)
        bars[nE+2] = [lambda st: st.wait_all_lg()]

        def qrecv(st):
            d = -8192 if role else 8192
            st(f'v_add_u32 v{vEXp}, {d & 0xffffffff}, v{vEXp}')
            st(f'ds_read_b128 {vr(send,4)}, v{vEXp}')
            st(f'ds_read_b128 {vr(send+4,4)}, v{vEXp} offset:1024')
        nQ = nE + 2 if role == 0 else nE + 6
        at(nQ, 0, qrecv)
        at(nQ, 3, lambda st: [st(f'v_add_f32 v{keep+i}, v{keep+i}, v{send+i}') for i in range(8)])
        ph = self.phi(list(range(keep, keep+8)), vT[0])
        at(nQ, 4, ph[0]); at(nQ+1, 1, ph[1])
        at(nQ+1, 2, lambda st: [st(f'v_cvt_pk_bf16_f32 v{PQ+i}, v{keep+2*i}, v{keep+2*i+1}') for i in range(4)])
        nP = nE + 2
        if role == 1:
            RA = [BX, BW]
            for i in range(8):
                n = nP + i // 4

                def rr(st, i=i):
                    st(f'ds_read_b128 {vr(RA[i%2],4)}, v{vRA} offset:{1024*i}')
                    st(f's_mov_b64 exec, {sMASK}')
                    st(f'ds_read_b128 {vr(RB[i%2],4)}, v{vRB} offset:{1024*i}')
                    st('s_mov_b64 exec, -1')

                def mm(st, i=i, rr=rr):
                    cc = '0' if i == 0 else vr(ACC, 16)
                    st(f'v_mfma_f32_32x32x16_bf16 {vr(ACC,16)}, {vr(RA[i%2],4)}, {vr(RB[i%2],4)}, {cc}')
                    if i + 2 < 8:
                        rr(st, i + 2)
                if i < 2:
                    at(nP, 0, rr)
                mf.setdefault(n, []).append(mm)

            def pst(st):
                for i in range(4):
                    st(f'v_cvt_pk_bf16_f32 v{ACC+i}, v{ACC+2*i}, v{ACC+2*i+1}')
                tok['part'] = st(f'buffer_store_dwordx4 {vr(ACC,4)}, v{vP1}, {WS}, {sPART} offen sc1')
            at(nP+2, 3, pst)

            def pfl(st):
                st.wait(vm=tok['part'])
                st(f'buffer_store_dword v{vNONCE}, v{vPF}, {WS}, {sF2} offen sc1')
            at(nP+5, 1, pfl)
        nPoll = nP + 2 + p['P2POLL']
        at(nPoll, 0, lambda st: st(f'buffer_load_dword v{vPV}, v{vP2}, {WS}, 0 offen sc1'))

        def pload(st):
            self.poll_check(st, f'p2r{role}', vP2, '0')
            for i in range(16):
                if i % 4 == 0:
                    st(f's_add_u32 {sT[0]}, {sPLD}, {i*1024}')
                off = (i % 4) * 1024
                st(f'buffer_load_dwordx4 {vr(BIG+4*i,4)}, v{vL16}, {WS}, {sT[0]} offen offset:{off} sc1'.replace(' offset:0', ''))
        at(nPoll+2, 3, pload)
        nM = nPoll + 5
        R = p['MIDRATE']
        for i in range(16):
            cc = '0' if i == 0 else vr(ACC, 16)
            mf.setdefault(nM + i // R, []).append(lambda st, i=i, cc=cc: st(
                f'v_mfma_f32_32x32x16_bf16 {vr(ACC,16)}, {vr(BIG+4*i,4)}, {vr(PQ,4)}, {cc}'))
        nO = nM + (16 + R - 1) // R

        def obfin(st):
            st(f'v_add_f32 v{ACC+8}, {f32(1e-6)}, v{ACC+8}')
            st(f'v_rcp_f32 v{ACC+8}, v{ACC+8}')
            st('s_nop 0')
            for i in range(8):
                st(f'v_mul_f32 v{ACC+i}, v{ACC+i}, v{ACC+8}')
            for i in range(4):
                st(f'v_cvt_pk_bf16_f32 v{ACC+i}, v{ACC+2*i}, v{ACC+2*i+1}')
            st(f's_mov_b32 {sT[0]}, {WS_OB}')
            tok['ob'] = st(f'buffer_store_dwordx4 {vr(ACC,4)}, v{vOst}, {WS}, {sT[0]} offen sc1')

        def obfl(st):
            st.wait(vm=tok['ob'])
            st(f'buffer_store_dword v{vNONCE}, v{vL0}, {WS}, {sF3} offen sc1')
        post = []

        def at2(n, pos, f):
            if n <= 63:
                at(n, pos, f)
            else:
                post.append(f)
        assert nO <= 64, nO
        at2(nO, 3, obfin)
        at2(nO + 3, 1, obfl)
        sW0 = B0 + 10
        pieces = [(WOB, L_X, i) for i in range(8)] + [(WOA, L_W, i) for i in range(8)]
        nsteps = 16 - sW0
        n0 = 4 * sW0
        per = -(-16 // max(1, (62 - n0)))
        for k, (srd, base, i) in enumerate(pieces):
            at(n0 + k // per, 4, save('wo', lambda st, srd=srd, base=base, i=i: self.dma(
                st, vDwo, srd, [f's_mov_b32 {sT[0]}, {i*65536}'], ('w', base + i*8192))))
        self.sched = dict(nE=nE, nP=nP, nPoll=nPoll, nM=nM, nO=nO)

        def run(n, pos):
            for f in ev.get((n, pos), []):
                f(st)

        def kvoff(kt):
            return (kt // 2 % 4) * 8192 + (kt % 2) * 4096

        st('s_barrier')
        self.stamp(st, 4)
        st(f'ds_read_b128 {vr(KF[0],4)}, v{vAK}')
        st(f's_mov_b64 exec, {sMASK}')
        st(f'ds_read_b128 {vr(VA[0],4)}, v{vAV}')
        st(f'ds_read_b128 {vr(VB[0],4)}, v{vAV} offset:512')
        st('s_mov_b64 exec, -1')
        st(f'v_mfma_f32_32x32x16_bf16 {vr(S[0],16)}, {vr(KF[0],4)}, {vr(Q[0],4)}, 0')
        st('s_nop 7')
        st('s_nop 2')
        for n in range(64):
            kt, r = n >> 1, n & 1
            s, sn = S[r], S[1-r]
            if n in bars and n > 0:
                for f in bars[n]:
                    f(st)
                st('s_barrier')
            if p['PRIO'] == 'lvl':
                st(f's_setprio {3 - n % 4}')
            extra = mf.get(n, [])
            if len(extra) == 0:
                pos = dict(pvb=1, qk=4, pva=10, ex=[])
            elif len(extra) == 1:
                pos = dict(pvb=1, qk=5, pva=9, ex=[13])
            elif len(extra) == 2:
                pos = dict(pvb=1, qk=4, pva=10, ex=[7, 13])
            elif len(extra) == 3:
                pos = dict(pvb=1, qk=4, pva=9, ex=[6, 12, 14])
            else:
                pos = dict(pvb=1, qk=3, pva=9, ex=[5, 7, 11, 13])
                assert len(extra) == 4
            if r == 0 and kt + 1 < 32:
                st(f'ds_read_b128 {vr(KF[(kt+1)%2],4)}, v{vAK} offset:{kvoff(kt+1)}')
            run(n, 0)
            xi = 0
            for i in range(16):
                st(f'v_exp_f32 v{s+i}, v{s+i}')
                if i == pos['pvb']:
                    if n > 0:
                        kp = (n - 1) >> 1
                        st(f'v_smfmac_f32_32x32x32_bf16 {vr(O[1-r],16)}, {vr(VB[kp%2],4)}, {vr(sn+8,8)}, v{vIDX}')
                    if r == 0 and kt + 1 < 32:
                        b = (kt + 1) % 2
                        st(f's_mov_b64 exec, {sMASK}')
                        st(f'ds_read_b128 {vr(VA[b],4)}, v{vAV} offset:{kvoff(kt+1)}')
                        st(f'ds_read_b128 {vr(VB[b],4)}, v{vAV} offset:{kvoff(kt+1)+512}')
                        st('s_mov_b64 exec, -1')
                    run(n, 1)
                if i == pos['qk']:
                    if n < 63:
                        kn = (n + 1) >> 1
                        st(f'v_mfma_f32_32x32x16_bf16 {vr(sn,16)}, {vr(KF[kn%2],4)}, {vr(Q[1-r],4)}, 0')
                    run(n, 2)
                if i == pos['pva']:
                    st(f'v_smfmac_f32_32x32x32_bf16 {vr(O[r],16)}, {vr(VA[kt%2],4)}, {vr(s,8)}, v{vIDX}')
                    run(n, 3)
                if xi < len(extra) and i == pos['ex'][xi]:
                    extra[xi](st)
                    xi += 1
                if i == 14:
                    run(n, 4)
        st('s_nop 1')
        st(f'v_smfmac_f32_32x32x32_bf16 {vr(O[1],16)}, {vr(VB[1],4)}, {vr(S[1]+8,8)}, v{vIDX}')
        st('s_setprio 0')
        self.stamp(st, 5)
        return tok, post

    def tail(self, st, role, tok, post):
        p = self.p
        mine, other = O[role], O[1-role]
        if role == 0:
            st('s_nop 7')
            st('s_nop 3')
        for i in range(3):
            st(f'ds_write_b128 v{vCB}, {vr(other+4*i,4)} offset:{1024*i}')
        st.wait(vm=tok['wo'])
        st.wait_all_lg()
        st('s_barrier')
        T = S[0]
        for i in range(3):
            st(f'ds_read_b128 {vr(T+4*i,4)}, v{vCBp} offset:{1024*i}')
        if role == 1:
            st('s_nop 3')
        for i in range(9):
            st(f'v_add_f32 v{mine+i}, v{mine+i}, v{T+i}')
        st(f'v_mov_b32 v{T}, v{mine+8}')
        for i in range(8):
            st(f'v_fmac_f32 v{T}, 0, v{mine+i}')
        lo, hi = (2.0**-40, 2.0**80) if not p['FORCEFB'] else (2.0**12, 2.0**80)
        st(f'v_cmp_nle_f32 vcc, {f32(lo)}, v{T}')
        st(f's_mov_b64 s[58:59], vcc')
        st(f'v_cmp_nge_f32 vcc, {f32(hi)}, v{T}')
        st(f's_or_b64 vcc, vcc, s[58:59]')
        st(f's_cbranch_scc1 L_fb{role}')
        st.label(f'L_fbback{role}')
        self.fallback(role)
        st(f'v_rcp_f32 v{mine+8}, v{mine+8}')
        st('s_nop 0')
        for i in range(8):
            st(f'v_mul_f32 v{mine+i}, v{mine+i}, v{mine+8}')
        od = vT[4]
        for i in range(4):
            st(f'v_cvt_pk_bf16_f32 v{od+i}, v{mine+2*i}, v{mine+2*i+1}')
        st(f's_mov_b32 {sT[0]}, {WS_OA}')
        toa = st(f'buffer_store_dwordx4 {vr(od,4)}, v{vOst}, {WS}, {sT[0]} offen sc1')
        self.stamp(st, 6)
        for f in post:
            f(st)
        acc = ACC2
        pool = lambda ks: 16 + 16 * (ks % 8)

        def rd(ks):
            for c in range(4):
                for u in range(2):
                    st(f'ds_read_b64_tr_b16 {vr(pool(ks)+4*c+2*u,2)}, v{vWO[c]} offset:{(32*ks+8*u)*128}')

        def flag4():
            st.wait(vm=toa)
            st(f'buffer_store_dword v{vNONCE}, v{vL0}, {WS}, {sF4} offen sc1')
        if role == 0:
            st(f'buffer_load_dword v{vPV}, v{vP3}, {WS}, 0 offen sc1')
            for ks in range(8):
                rd(ks)
            flag4()
        else:
            for ks in range(8):
                rd(ks)
            flag4()
            st.wait_all_vm()
            st(f'buffer_load_dword v{vPV}, v{vP3}, {WS}, 0 offen sc1')
        self.poll_check(st, f'p3r{role}', vP3, '0')
        self.stamp(st, 7)
        for i in range(16):
            if i % 4 == 0:
                st(f's_add_u32 {sT[0]}, {sOLD}, {i*1024}')
            off = (i % 4) * 1024
            st(f'buffer_load_dwordx4 {vr(BIG+4*i,4)}, v{vL16}, {WS}, {sT[0]} offen offset:{off} sc1'.replace(' offset:0', ''))
        for ks in range(16):
            for c in range(4):
                cc = '0' if ks == 0 else vr(acc+4*c, 4)
                st(f'v_mfma_f32_16x16x32_bf16 {vr(acc+4*c,4)}, {vr(pool(ks)+4*c,4)}, {vr(BIG+4*ks,4)}, {cc}')
            if ks + 8 < 16:
                rd(ks + 8)
        self.stamp(st, 8)
        st('s_nop 4')
        for i in range(8):
            st(f'v_cvt_pk_bf16_f32 v{16+i}, v{acc+2*i}, v{acc+2*i+1}')
        st('s_nop 1')
        for c in (0, 2):
            st(f'v_permlane16_swap_b32 v{16+2*c}, v{16+2*c+2}')
            st(f'v_permlane16_swap_b32 v{16+2*c+1}, v{16+2*c+3}')
        fl = (' ' + p['OUTFLAG']) if p['OUTFLAG'] else ''
        st(f'buffer_store_dwordx4 {vr(16,4)}, v{vOut}, {OUT}, 0 offen{fl}')
        st(f'buffer_store_dwordx4 {vr(20,4)}, v{vOut}, {OUT}, 0 offen offset:64{fl}')
        if p['STAMP']:
            st.wait_all_vm()
            self.stamp(st, 9)
            st(f'v_mov_b32 v16, 0')
            for k in range(10):
                st(f'v_writelane_b32 v16, s{STAMP0+2*k}, {k}')
            st(f's_lshl_b32 {sT[0]}, {sB}, 3')
            st(f's_add_u32 {sT[0]}, {sT[0]}, {sW}')
            st(f's_lshl_b32 {sT[0]}, {sT[0]}, 6')
            st(f's_add_u32 {sT[0]}, {sT[0]}, {WS_STAMP}')
            st(f'v_lshlrev_b32 v17, 2, v{vL}')
            st('s_mov_b64 exec, 0xffff')
            st(f'buffer_store_dword v16, v17, {WS}, {sT[0]} offen')
        st('s_endpgm')

    def fallback(self, role):
        f = Stream()
        mine, q = O[role], Q[role]
        s, nm = S[0], S[1]
        m, a = vT[0], vT[1]
        f.label(f'L_fb{role}')
        f(f'v_mov_b32 v{m}, 0xff800000')
        f(f's_mov_b32 {sT[0]}, {WS_KV}')
        f.label(f'L_fb{role}_a')
        f(f'buffer_load_dwordx4 {vr(KF[0],4)}, v{vL16}, {WS}, {sT[0]} offen sc1')
        f.wait_all_vm()
        f(f'v_mfma_f32_32x32x16_bf16 {vr(s,16)}, {vr(KF[0],4)}, {vr(q,4)}, 0')
        f('s_nop 15')
        for i in range(8):
            f(f'v_max3_f32 v{m}, v{m}, v{s+2*i}, v{s+2*i+1}')
        f(f's_add_u32 {sT[0]}, {sT[0]}, 2048')
        f(f's_cmp_lt_u32 {sT[0]}, {WS_KV + 131072}')
        f(f's_cbranch_scc1 L_fb{role}_a')
        f(f'v_mov_b32 v{a}, v{m}')
        f('s_nop 1')
        f(f'v_permlane32_swap_b32 v{a}, v{m}')
        f('s_nop 1')
        f(f'v_max_f32 v{m}, v{m}, v{a}')
        for i in range(16):
            f(f'v_sub_f32 v{nm+i}, 0, v{m}')
            f(f'v_mov_b32 v{mine+i}, 0')
        f(f'v_and_b32 v{a}, 2047, v{vAV}')
        f(f's_mov_b32 {sT[0]}, {WS_KV}')
        f.label(f'L_fb{role}_b')
        f(f'buffer_load_dwordx4 {vr(KF[0],4)}, v{vL16}, {WS}, {sT[0]} offen sc1')
        f(f's_mov_b64 exec, {sMASK}')
        f(f'buffer_load_dwordx4 {vr(VA[0],4)}, v{a}, {WS}, {sT[0]} offen sc1')
        f(f'buffer_load_dwordx4 {vr(VB[0],4)}, v{a}, {WS}, {sT[0]} offen offset:512 sc1')
        f('s_mov_b64 exec, -1')
        f.wait_all_vm()
        f(f'v_mfma_f32_32x32x16_bf16 {vr(s,16)}, {vr(KF[0],4)}, {vr(q,4)}, {vr(nm,16)}')
        f('s_nop 15')
        for i in range(16):
            f(f'v_exp_f32 v{s+i}, v{s+i}')
        f('s_nop 1')
        f(f'v_smfmac_f32_32x32x32_bf16 {vr(mine,16)}, {vr(VA[0],4)}, {vr(s,8)}, v{vIDX}')
        f(f'v_smfmac_f32_32x32x32_bf16 {vr(mine,16)}, {vr(VB[0],4)}, {vr(s+8,8)}, v{vIDX}')
        f(f's_add_u32 {sT[0]}, {sT[0]}, 2048')
        f(f's_cmp_lt_u32 {sT[0]}, {WS_KV + 131072}')
        f('s_nop 15')
        f(f's_cbranch_scc1 L_fb{role}_b')
        f(f's_branch L_fbback{role}')
        self.paths.append((f'fb{role}', f.path))
        self.side.append(f.text())

    def build(self):
        e = self.entry()
        w0txt, w0 = self.front_w0(e)
        w123 = self.front_w123(e)
        r1 = self.front_role1(e)
        m0 = Stream(w0)
        m0.lg_done = m0.nlg if False else m0.lg_done
        m0.label('L_main0')
        m0.pend[('v', vPV)] = ('vm', m0.nvm)
        tok, post = self.main(m0, 0)
        self.tail(m0, 0, tok, post)
        tok, post = self.main(r1, 1)
        self.tail(r1, 1, tok, post)
        self.paths.append(('w0V', m0.path))
        self.paths.append(('w123', w123.path + m0.path[len(w0.path):]))
        self.paths.append(('role1', r1.path))
        probs = []
        for nm, path in self.paths:
            probs += check_path(path, nm)
        hdr = open('cdna_kernels/' + NAME + '.s.ref').read().split('; Override launch')[0]
        txt = hdr + f"""; @launch grid=(256,1,1) block=(512,1,1) lds=163840
; Generated by a hand-written emitter script (fused MQA softmax attention + linear attention + output projections).
.amdgcn_target "amdgcn-amd-amdhsa--gfx950"
.text
.globl {KERNEL}
.p2align 8
.type {KERNEL},@function
{KERNEL}:
{e.text()}
{w0txt}
{m0.text()}
{w123.text()}
{r1.text()}
""" + '\n'.join(self.side) + f"""
L_exit:
  s_endpgm
L_codeend:
.section .rodata,"a"
.p2align 6
.amdhsa_kernel {KERNEL}
  .amdhsa_next_free_vgpr 256
  .amdhsa_next_free_sgpr 102
  .amdhsa_accum_offset 256
  .amdhsa_group_segment_fixed_size 0
  .amdhsa_kernarg_size 88
  .amdhsa_user_sgpr_count 2
  .amdhsa_user_sgpr_kernarg_segment_ptr 1
  .amdhsa_system_sgpr_workgroup_id_x 1
.end_amdhsa_kernel
"""
        return txt, sorted(set(probs))


if __name__ == '__main__':
    kw = {}
    out = 'cdna_kernels/' + NAME + '.s'
    for a in sys.argv[1:]:
        k, v = a.split('=', 1)
        if k == 'out':
            out = v
        else:
            kw[k] = int(v) if v.lstrip('-').isdigit() else v
    g = Gen(**kw)
    txt, probs = g.build()
    open(out, 'w').write(txt)
    print('sched', g.sched, 'lines', txt.count('\n'))
    for x in probs:
        print('HAZARD', x)
```
